```python
import torch

def _softmax(x, axis=-1):
    return torch.softmax(x, dim=axis)
def _gelu(x):
    return torch.nn.functional.gelu(x, approximate="tanh")
def _silu(x):
    return torch.nn.functional.silu(x)
def _sigmoid(x):
    return torch.sigmoid(x)
def _layernorm(x, axis=-1, eps=1e-5):
    m = x.mean(dim=axis, keepdim=True)
    v = x.var(dim=axis, keepdim=True, unbiased=False)
    return (x - m) / torch.sqrt(v + eps)
def _scatter_add(tgt, idx, src, axis=0):
    return tgt.clone().index_add_(axis, idx, src)
def _segment_sum(src, seg, n):
    out = torch.zeros((n,) + src.shape[1:], dtype=src.dtype)
    return out.index_add_(0, seg, src)
def _pad(x, pw):
    flat = tuple(v for pair in reversed(pw) for v in pair)
    return torch.nn.functional.pad(x, flat)

kernel_name = 'recurrent_scan__sliding_block_cached__glu_gated_swiglu__prompt'

def setup_inputs():

    _w = (lambda a: (lambda t: t.to(torch.bfloat16) if t.is_floating_point() else t)(torch.as_tensor(a)))
    def _A_setup():
        B, Sq, D = 1, 2048, 640
        Hq, Hkv, Sk, Dh = 32, 32, 2048, 128
        assert Hq % Hkv == 0, (Hq, Hkv)
        return {
            "x": _w((lambda *s: torch.randn(*s, dtype=torch.bfloat16) * 0.05)(B, Sq, D)),
            "k_cache": _w((lambda *s: torch.randn(*s, dtype=torch.bfloat16) * 1.6)(B, Hkv, Sk, Dh)),
            "v_cache": _w((lambda *s: torch.randn(*s, dtype=torch.bfloat16) * 1.6)(B, Hkv, Sk, Dh)),
            "wq": _w((lambda *s: torch.randn(*s, dtype=torch.bfloat16) * 1.6)(D, Hq * Dh) * (D ** -0.5)),
            "wo": _w((lambda *s: torch.randn(*s, dtype=torch.bfloat16) * 1.6)(Hq * Dh, D) * ((Hq * Dh) ** -0.5)),
        }
    _A_in = _A_setup()

    def _B_setup():
        B, S, D, F = 1, 2048, 640, 1728
        return {
            "x": _w((lambda *s: torch.randn(*s, dtype=torch.bfloat16) * 0.05)(B, S, D)),
            "w1": _w((lambda *s: torch.randn(*s, dtype=torch.bfloat16) * 0.2)(D, F) * (2.0 / D) ** 0.5),
            "w3": _w((lambda *s: torch.randn(*s, dtype=torch.bfloat16) * 0.2)(D, F) * (2.0 / D) ** 0.5),
            "w2": _w((lambda *s: torch.randn(*s, dtype=torch.bfloat16) * 0.2)(F, D) * (2.0 / F) ** 0.5),
        }
    _B_in = _B_setup()

    return {
        "A_x": _A_in["x"],
        "A_k_cache": _A_in["k_cache"],
        "A_v_cache": _A_in["v_cache"],
        "A_wq": _A_in["wq"],
        "A_wo": _A_in["wo"],
        "B_x": _B_in["x"],
        "B_w1": _B_in["w1"],
        "B_w3": _B_in["w3"],
        "B_w2": _B_in["w2"],
    }

def reference(A_x, A_k_cache, A_v_cache, A_wq, A_wo, B_x, B_w1, B_w3, B_w2):
    def _A_ref(x, k_cache, v_cache, wq, wo):
        B, Sq, D = x.shape
        Hq, Dh = 32, 128
        Hkv, Sk = k_cache.shape[1], k_cache.shape[2]
        W = min(4096, max(256, Sk // 4))
        rep = Hq // Hkv
        q = (lambda x, *d: x.permute(*d))((x @ wq).reshape(B, Sq, Hq, Dh), 0, 2, 1, 3)
        k = (lambda x, n, axis: torch.repeat_interleave(x, n, dim=axis))(k_cache[:, :, Sk - W:, :], rep, axis=1)
        v = (lambda x, n, axis: torch.repeat_interleave(x, n, dim=axis))(v_cache[:, :, Sk - W:, :], rep, axis=1)
        scores = torch.einsum("bhqd,bhkd->bhqk", q, k) * (Dh ** -0.5)
        p = _softmax(scores, axis=-1)
        o = torch.einsum("bhqk,bhkd->bhqd", p, v)
        return (lambda x, *d: x.permute(*d))(o, 0, 2, 1, 3).reshape(B, Sq, Hq * Dh) @ wo

    def _B_ref(x, w1, w3, w2):
        gate = torch.einsum("bsd,df->bsf", x, w1)
        up = torch.einsum("bsd,df->bsf", x, w3)
        h = _silu(gate) * up
        out = torch.einsum("bsf,fd->bsd", h, w2)
        return out

    x = A_x
    xn = _layernorm(x, axis=-1)
    s = _A_ref(xn, A_k_cache, A_v_cache, A_wq, A_wo)
    g = _silu(_B_ref(xn, B_w1, B_w3, B_w2))
    return x + s * g
```

```python
from fw import *

NAME = "recurrent_scan__sliding_block_cached__glu_gated_swiglu__prompt"

XN_OFF = 0x0
AB_OFF = 0x300000
AB_RB = 182 * 2048
AB_END = AB_OFF + 64 * AB_RB
WP_OFF = 0x1A00000
PT_OFF = 0x2400000
TS_OFF = 0x3800000
WS_SIZE = 0x4000000

LOG2E = 1.4426950408889634


def f32(x):
    import struct
    return "0x%08x" % struct.unpack("<I", struct.pack("<f", x))[0]


def vr(b, n):
    return f"v[{b}:{b+n-1}]" if n > 1 else f"v{b}"


def ar(b, n):
    return f"a[{b}:{b+n-1}]" if n > 1 else f"a{b}"


def sr(b, n):
    return f"s[{b}:{b+n-1}]" if n > 1 else f"s{b}"


P_X, P_K, P_V, P_WQ, P_WO, P_BX, P_W1, P_W3, P_W2, P_OUT, P_DBG, P_WS = [64 + 2 * i for i in range(12)]


def load_kernargs(p):
    p("s_load_dwordx16 s[64:79], s[0:1], 0")
    p("s_load_dwordx8 s[80:87], s[0:1], 64")


def srd(p, d, ptr, size, off=None):
    if off is None:
        p(f"s_mov_b32 s{d}, s{ptr}")
        p(f"s_mov_b32 s{d+1}, s{ptr+1}")
        p(f"s_mov_b32 s{d+2}, {size}")
    else:
        p(f"s_add_u32 s{d}, s{ptr}, s{off}")
        p(f"s_addc_u32 s{d+1}, s{ptr+1}, 0")
        if isinstance(size, tuple):
            p(f"s_mov_b32 s{d+2}, {size[0]}")
        else:
            p(f"s_sub_u32 s{d+2}, {size}, s{off}")
    p(f"s_mov_b32 s{d+3}, 0x20000")


class Stamps:
    def __init__(self, on, kidx):
        self.on = on
        self.n = 0
        self.kidx = kidx

    def stamp(self, p):
        if not self.on:
            return
        assert self.n < 6
        p(f"s_memrealtime s[{88+2*self.n}:{89+2*self.n}]")
        p("s_waitcnt lgkmcnt(0)")
        self.n += 1

    def flush(self, p, ws_srd, vtmp, vaddr):
        if not self.on:
            return
        p(f"v_lshrrev_b32 v{vaddr}, 6, v0")
        p(f"s_lshl_b32 s100, s2, 3")
        p(f"v_add_u32 v{vaddr}, s100, v{vaddr}")
        p(f"v_lshlrev_b32 v{vaddr}, 5, v{vaddr}")
        p(f"s_mov_b32 s100, {TS_OFF + self.kidx * 65536}")
        for k in range(self.n):
            p(f"v_mov_b32 v{vtmp}, s{88+2*k}")
            p(f"buffer_store_dword v{vtmp}, v{vaddr}, {sr(ws_srd,4)}, s100 offen offset:{4*k}")
```

```python
import re

TRANS = ("v_exp_f32", "v_log_f32", "v_rcp_f32", "v_rsq_f32", "v_sqrt_f32", "v_sin_f32", "v_cos_f32", "v_rcp_iflag_f32")


def regs_of(op):
    op = op.strip()
    if op.startswith("-"):
        op = op[1:]
    m = re.fullmatch(r"abs\((.*)\)|\|(.*)\|", op)
    if m:
        op = m.group(1) or m.group(2)
    m = re.fullmatch(r"([vas])(\d+)", op)
    if m:
        return [(m.group(1), int(m.group(2)))]
    m = re.fullmatch(r"([vas])\[(\d+):(\d+)\]", op)
    if m:
        return [(m.group(1), i) for i in range(int(m.group(2)), int(m.group(3)) + 1)]
    if op == "vcc":
        return [("x", "vcc")]
    if op == "m0":
        return [("x", "m0")]
    if op == "exec":
        return [("x", "exec")]
    return []


class I:
    def __init__(self, text, tag=None, wait_vm=None, wait_lgkm=None, cmt=None):
        self.text = text
        self.tag = tag
        self.wait_vm = wait_vm
        self.wait_lgkm = wait_lgkm
        self.cmt = cmt
        self.pre_vm = None
        self.pre_lgkm = None
        self.pre_nop = 0
        self.parse()

    def parse(self):
        t = self.text.strip()
        self.kind = "other"
        self.rd, self.wr = set(), set()
        self.srcc = set()
        if t.endswith(":") or t.startswith(".") or t.startswith(";") or not t:
            self.kind = "label"
            self.mn = ""
            return
        parts = t.split(None, 1)
        mn = parts[0]
        self.mn = mn
        rest = parts[1] if len(parts) > 1 else ""
        ops = [o.strip() for o in rest.split(",")] if rest else []
        mods = ""
        if ops:
            last = ops[-1].split(None, 1)
            cleaned = []
            for k, o in enumerate(ops):
                sp = o.split(None, 1)
                cleaned.append(sp[0])
                if len(sp) > 1:
                    mods = sp[1] + "," + ",".join(ops[k + 1:])
                    break
            ops = cleaned
        self.mods = mods
        R = lambda k: set(regs_of(ops[k])) if k < len(ops) else set()
        base = re.sub(r"_(e32|e64|dpp|sdwa)$", "", mn)
        if mn.startswith("v_mfma"):
            self.kind = "mfma"
            self.passes = 8 if "32x32x16" in mn else 4
            self.wr = R(0)
            self.srcab = R(1) | R(2)
            self.srcc = R(3)
            self.rd = self.srcab | self.srcc
        elif mn.startswith("ds_read"):
            self.kind = "ds"
            self.wr = R(0)
            self.rd = R(1)
        elif mn.startswith("ds_write"):
            self.kind = "ds"
            self.rd = R(0) | R(1) | R(2)
        elif mn.startswith("ds_bpermute") or mn.startswith("ds_swizzle"):
            self.kind = "ds"
            self.wr = R(0)
            self.rd = R(1) | R(2)
        elif mn.startswith("buffer_load"):
            self.kind = "vm"
            if re.search(r"\blds\b", mods):
                self.dma = True
                self.rd = R(0) | R(1) | R(2) | {("x", "m0")}
            else:
                self.wr = R(0)
                self.rd = R(1) | R(2) | R(3)
        elif mn.startswith("buffer_store"):
            self.kind = "vm"
            self.store = R(0)
            self.rd = R(0) | R(1) | R(2) | R(3)
        elif mn.startswith("buffer_atomic"):
            self.kind = "vm"
            self.rd = R(0) | R(1) | R(2) | R(3)
            if re.search(r"\bsc0\b", mods):
                self.wr = R(0)
        elif mn.startswith("global_load"):
            self.kind = "vm"
            self.wr = R(0)
            self.rd = R(1) | R(2)
        elif mn.startswith("global_store"):
            self.kind = "vm"
            self.store = R(1)
            self.rd = R(0) | R(1) | R(2)
        elif mn in ("buffer_wbl2", "buffer_inv"):
            self.kind = "vm"
        elif mn.startswith("s_load") or mn in ("s_memtime", "s_memrealtime"):
            self.kind = "smem"
            self.wr = R(0)
            self.rd = R(1)
        elif mn == "s_waitcnt":
            self.kind = "wait"
        elif mn == "s_nop":
            self.kind = "nop"
            self.n = int(ops[0]) + 1
        elif mn in ("s_barrier", "s_endpgm", "s_sleep", "s_setprio"):
            self.kind = "salu"
        elif mn.startswith("s_cbranch") or mn == "s_branch":
            self.kind = "branch"
            if "vcc" in mn:
                self.rd = {("x", "vcc")}
        elif mn.startswith("s_cmp") or mn.startswith("s_bitcmp"):
            self.kind = "salu"
            self.rd = R(0) | R(1)
        elif mn.startswith("s_"):
            self.kind = "salu"
            self.wr = R(0)
            for k in range(1, len(ops)):
                self.rd |= R(k)
            if "saveexec" in mn:
                self.wr |= {("x", "exec")}
            if mn in ("s_addk_i32", "s_mulk_i32"):
                self.rd |= R(0)
        elif mn.startswith("v_"):
            self.kind = "trans" if base in TRANS else "valu"
            self.wr = R(0)
            first = 1
            if base in ("v_add_co_u32", "v_sub_co_u32", "v_addc_co_u32", "v_subb_co_u32", "v_div_scale_f32"):
                self.wr |= R(1)
                first = 2
            for k in range(first, len(ops)):
                self.rd |= R(k)
            if base.startswith("v_permlane") and "swap" in base:
                self.wr |= R(1)
                self.rd |= R(0)
                self.perm = True
            if base in ("v_fmac_f32", "v_pk_fmac_f16", "v_dot2c_f32_bf16"):
                self.rd |= R(0)
            if base == "v_cndmask_b32" and len(ops) == 3:
                self.rd |= {("x", "vcc")}
            self.dpp = mn.endswith("_dpp") or "row_" in mods or "quad_perm" in mods
            if self.dpp:
                self.rd |= R(0)
        else:
            raise ValueError("unknown instruction: " + t)

    @property
    def isvalu(self):
        return self.kind in ("valu", "trans")

    def cost(self):
        if self.kind == "trans":
            return 2
        if self.kind in ("valu", "ds", "vm"):
            return 1
        return 0


class Prog:
    def __init__(self):
        self.ins = []

    def __call__(self, text, **kw):
        for line in text.strip("\n").split("\n"):
            line = line.strip()
            if not line:
                continue
            self.ins.append(I(line, **kw))
        return self.ins[-1]

    def add(self, lst):
        for x in lst:
            self.ins.append(x if isinstance(x, I) else I(x))


def insert_waits(path):
    vm, lg = [], []
    maxvm = 0
    changed = False
    keep = lambda q, n: q[len(q) - n:] if 0 < n < len(q) else ([] if n == 0 else q)
    for x in path:
        if x.kind == "label":
            continue
        if x.kind == "wait":
            m = re.search(r"vmcnt\((\d+)\)", x.text)
            if m:
                vm = keep(vm, int(m.group(1)))
            m = re.search(r"lgkmcnt\((\d+)\)", x.text)
            if m:
                n = int(m.group(1))
                assert n == 0 or not any(o.kind == "smem" for o in lg)
                lg = keep(lg, n)
            continue
        if x.pre_vm is not None:
            vm = keep(vm, x.pre_vm)
        if x.pre_lgkm is not None:
            if x.pre_lgkm == 0 or not any(o.kind == "smem" for o in lg):
                lg = keep(lg, x.pre_lgkm)
        touch = x.rd | x.wr
        need = -1
        for k, o in enumerate(vm):
            if (o.wr & touch) or (x.wait_vm and (x.wait_vm == "all" or o.tag in x.wait_vm)):
                need = k
        if x.kind == "vm" and len(vm) - 1 - need >= 63:
            need = len(vm) - 63
        if need >= 0:
            n = len(vm) - 1 - need
            x.pre_vm = n
            changed = True
            vm = keep(vm, n)
        need = -1
        for k, o in enumerate(lg):
            if (o.wr & touch) or (x.wait_lgkm and (x.wait_lgkm == "all" or o.tag in x.wait_lgkm)):
                need = k
        if x.kind == "ds" and len(lg) - 1 - need >= 15:
            need = len(lg) - 15
        if need >= 0:
            n = len(lg) - 1 - need
            if any(o.kind == "smem" for o in lg):
                n = 0
            x.pre_lgkm = n
            changed = True
            lg = keep(lg, n)
        if x.kind == "vm":
            vm.append(x)
            maxvm = max(maxvm, len(vm))
        elif x.kind in ("ds", "smem"):
            lg.append(x)
    return changed


def pad_hazards(path, report=False):
    hist = []
    pos = 0
    changed = False
    VA = lambda s: {r for r in s if r[0] in "va"}
    SG = lambda s: {r for r in s if r[0] == "s" or r == ("x", "vcc")}
    for x in path:
        if x.kind == "label":
            continue
        if x.pre_vm is not None or x.pre_lgkm is not None:
            pos += 1
        pos += x.pre_nop
        need = 0
        why = None
        for (p, ppos) in reversed(hist):
            d = pos - ppos - 1
            if d >= 20:
                break
            req = 0
            if p.isvalu:
                if x.kind == "mfma" and (VA(p.wr) & x.rd):
                    req = max(req, 2)
                if p.kind == "trans" and x.kind == "valu" and (p.wr & x.rd):
                    req = max(req, 1)
                if x.isvalu and getattr(x, "perm", False) and (VA(p.wr) & x.rd):
                    req = max(req, 2)
                if x.isvalu and getattr(x, "dpp", False) and (VA(p.wr) & x.rd):
                    req = max(req, 2)
                if x.mn.startswith("v_readfirstlane") or x.mn.startswith("v_readlane"):
                    if VA(p.wr) & x.rd:
                        req = max(req, 1)
                if x.isvalu and (SG(p.wr) & x.rd):
                    req = max(req, 2)
                if x.kind == "vm" and (SG(p.wr) & x.rd):
                    req = max(req, 5)
                if x.kind in ("salu", "branch", "smem") and (SG(p.wr) & x.rd):
                    req = max(req, 4)
            if p.kind == "mfma":
                big = 12 if p.passes == 8 else 8
                ovl = 10 if p.passes == 8 else 6
                war = 7 if p.passes == 8 else 3
                if x.kind == "mfma":
                    chain = (p.wr == x.srcc and p.passes == x.passes)
                    if p.wr & x.srcab:
                        req = max(req, big)
                    if (p.wr & (x.srcc | x.wr)) and not chain:
                        req = max(req, ovl)
                elif x.isvalu or x.kind in ("ds", "vm"):
                    if p.wr & (x.rd | x.wr):
                        req = max(req, big)
                if (x.isvalu or x.kind in ("ds", "vm")) and (p.srcc & x.wr):
                    req = max(req, war)
            if p.kind == "salu" and ("x", "m0") in p.wr and getattr(x, "dma", False):
                req = max(req, 1)
            if p.kind == "vm" and len(getattr(p, "store", ())) >= 3 and (p.store & x.wr):
                req = max(req, 2)
            if req - d > need:
                need = req - d
                why = p
        if need > 0:
            if report:
                print(f"pad {need} before [{x.text}] because of [{why.text}]")
            x.pre_nop += need
            pos += need
            changed = True
        if x.kind == "nop":
            pos += x.n - 1
        hist.append((x, pos))
        pos += 1
        if len(hist) > 64:
            hist = hist[-40:]
    return changed


def finalize(paths, report=False):
    for _ in range(10):
        if not any([insert_waits(p) for p in paths]):
            break
    else:
        raise RuntimeError("waits did not converge")
    for _ in range(10):
        if not any([pad_hazards(p, report) for p in paths]):
            break


def flat(lst):
    out = []
    for x in lst:
        w = []
        if x.pre_vm is not None:
            w.append(f"vmcnt({x.pre_vm})")
        if x.pre_lgkm is not None:
            w.append(f"lgkmcnt({x.pre_lgkm})")
        if w:
            out.append(I("s_waitcnt " + " ".join(w)))
        k = x.pre_nop
        while k > 0:
            c = min(k, 16)
            out.append(I(f"s_nop {c-1}"))
            k -= c
        out.append(x)
    return out


def text_of(lst):
    return "\n".join(x.text + (f" ; {x.cmt}" if x.cmt and x.kind != "label" else "") for x in flat(lst)) + "\n"


def estimate(lst):
    t = mfree = vblock = 0
    prev = None
    for x in flat(lst):
        if x.kind == "label":
            continue
        if x.kind == "mfma":
            t = max(t, mfree, vblock)
            mfree = t + 4 * x.passes
            vblock = t + 8
            t += 4
        elif x.isvalu:
            t = max(t, vblock)
            t += 8 if x.kind == "trans" else 4
        elif x.kind in ("ds", "vm"):
            if prev is not None and prev.isvalu:
                t += 4
            t += 4
            vblock = max(vblock, t + 4)
        elif x.kind == "nop":
            t += 4 * x.n
        else:
            t += 4
        prev = x
    return max(t, mfree)


def _conf(a, b):
    return bool((a.wr & (b.rd | b.wr)) or (a.rd & b.wr))


def schedule(mf, fill, carry=None, cap=None, carry_from=0):
    n = len(mf)
    queues = {}
    for k, (g, x, q) in enumerate(fill):
        queues.setdefault(q, []).append([g, x if isinstance(x, list) else [x]])
    out = []
    for g in range(n):
        c = cap if cap is not None else (6 if mf[g].passes == 8 else 2)
        mem, val = [], []
        st = {"used": 0, "nsal": 0}

        def fits(grp):
            cost = sum(i.cost() for i in grp)
            sal = sum(1 for i in grp if i.cost() == 0)
            extra = max(0, st["nsal"] + sal - 1) - max(0, st["nsal"] - 1)
            return st["used"] + cost + extra <= c or (st["used"] == 0 and st["nsal"] == 0)

        def place(grp):
            cost = sum(i.cost() for i in grp)
            sal = sum(1 for i in grp if i.cost() == 0)
            extra = max(0, st["nsal"] + sal - 1) - max(0, st["nsal"] - 1)
            st["used"] += cost + extra
            st["nsal"] += sal
            if any(i.isvalu for i in grp) or any(_conf(a, b) for a in val for b in grp):
                val.extend(grp)
            else:
                mem.extend(grp)

        progress = True
        while progress:
            progress = False
            cands = [(q[0][0], name) for name, q in queues.items() if q and q[0][0] <= g]
            cands.sort()
            for (_, name) in cands:
                grp = queues[name][0][1]
                if fits(grp):
                    queues[name].pop(0)
                    place(grp)
                    progress = True
                    break
        while carry and g >= carry_from:
            grp = carry[0] if isinstance(carry[0], list) else [carry[0]]
            cost = sum(i.cost() for i in grp)
            if st["used"] + cost <= c and fits(grp):
                carry.pop(0)
                place(grp)
            else:
                break
        out.append(mf[g])
        out += mem + val
    rest = []
    for name, q in queues.items():
        for (g, grp) in q:
            rest.append((g, grp))
    rest.sort(key=lambda z: z[0])
    for (_, grp) in rest:
        out += grp
    return out


def kernel_text(name, body, vgpr=512, accum=256, sgpr=102):
    return f""".text
.globl {name}
.p2align 8
.type {name},@function
{name}:
{body}"""


def kd_text(name, vgpr=512, accum=256, sgpr=102):
    return f""".p2align 6
.amdhsa_kernel {name}
  .amdhsa_next_free_vgpr {vgpr}
  .amdhsa_next_free_sgpr {sgpr}
  .amdhsa_accum_offset {accum}
  .amdhsa_group_segment_fixed_size 0
  .amdhsa_kernarg_size 96
  .amdhsa_user_sgpr_count 2
  .amdhsa_user_sgpr_kernarg_segment_ptr 1
  .amdhsa_system_sgpr_workgroup_id_x 1
.end_amdhsa_kernel
"""
```

```python
from common import *


def gen_k0(ts=False):
    p = Prog()
    st = Stamps(ts, 0)
    p("s_cmp_ge_u32 s2, 128")
    p("s_cbranch_scc1 L0_end")
    load_kernargs(p)
    st.stamp(p)
    p("v_and_b32 v1, 63, v0")
    p("v_lshrrev_b32 v2, 6, v0")
    p("v_and_b32 v3, 15, v1")
    p("v_lshrrev_b32 v4, 4, v1")
    p("s_lshl_b32 s3, s2, 4")
    p("v_add_u32 v5, s3, v3")
    p("v_mul_u32_u24 v5, 1280, v5")
    p("v_lshl_add_u32 v5, v2, 8, v5")
    p("v_lshl_add_u32 v5, v4, 3, v5")
    p("s_waitcnt lgkmcnt(0)")
    srd(p, 8, P_X, 2048 * 1280)
    srd(p, 4, P_WS, WS_SIZE)
    for i in range(4):
        for hh in range(2):
            p(f"buffer_load_dwordx2 {vr(16+4*i+2*hh,2)}, v5, s[8:11], 0 offen offset:{64*i+32*hh}")
    p("v_mul_u32_u24 v6, 80, v3")
    p("v_lshl_add_u32 v7, v2, 4, v6")
    p("v_lshl_add_u32 v7, v4, 2, v7")
    p("s_lshr_b32 s12, s2, 2")
    p("s_mul_i32 s12, s12, 81920")
    p("s_and_b32 s13, s2, 3")
    p("s_lshl_b32 s13, s13, 12")
    p("s_add_u32 s12, s12, s13")
    if XN_OFF:
        p(f"s_add_u32 s12, s12, {XN_OFF}")
    p("v_lshlrev_b32 v8, 4, v1")
    p("v_lshl_add_u32 v8, v2, 14, v8")
    for d in range(16):
        p(f"v_lshlrev_b32 v{32+2*d}, 16, v{16+d}")
        p(f"v_and_b32 v{33+2*d}, 0xffff0000, v{16+d}")

    def tree(dst, srcs):
        for k in range(4):
            p(f"v_add_f32 v{dst+k}, v{srcs[k]}, v{srcs[k+4]}")
        for m in range(8, len(srcs)):
            p(f"v_add_f32 v{dst+m%4}, v{dst+m%4}, v{srcs[m]}")
        p(f"v_add_f32 v{dst}, v{dst}, v{dst+1}")
        p(f"v_add_f32 v{dst+2}, v{dst+2}, v{dst+3}")
        p(f"v_add_f32 v{dst}, v{dst}, v{dst+2}")

    def allsum(src, region):
        p(f"ds_write_b32 v7, v{src} offset:{region}")
        p("s_barrier", wait_lgkm="all")
        for k in range(5):
            p(f"ds_read_b128 {vr(64+4*k,4)}, v6 offset:{region+16*k}")
        tree(12, list(range(64, 84)))

    tree(12, list(range(32, 64)))
    allsum(12, 0)
    p(f"v_mul_f32 v9, {f32(1.0/640)}, v12")
    for e in range(32):
        p(f"v_sub_f32 v{32+e}, v{32+e}, v9")
    for k in range(4):
        p(f"v_mul_f32 v{12+k}, v{32+k}, v{32+k}")
    for e in range(4, 32):
        p(f"v_fmac_f32 v{12+e%4}, v{32+e}, v{32+e}")
    p("v_add_f32 v12, v12, v13")
    p("v_add_f32 v14, v14, v15")
    p("v_add_f32 v12, v12, v14")
    allsum(12, 1280)
    p(f"v_mov_b32 v10, {f32(1e-5)}")
    p(f"v_fmac_f32 v10, {f32(1.0/640)}, v12")
    p("v_rsq_f32 v10, v10")
    for e in range(32):
        p(f"v_mul_f32 v{32+e}, v{32+e}, v10")
    for d in range(16):
        p(f"v_cvt_pk_bf16_f32 v{16+d}, v{32+2*d}, v{33+2*d}")
    for i in range(4):
        p(f"buffer_store_dwordx4 {vr(16+4*i,4)}, v8, s[4:7], s12 offen offset:{1024*i}")
    st.stamp(p)
    st.flush(p, 4, 9, 10)
    p("L0_end:")
    p("s_endpgm")
    finalize([p.ins])
    return text_of(p.ins)
```

```python
from common import *

S_WS, S_WQ, S_W1, S_W3, S_K, S_V, S_PA, S_PB = 4, 8, 12, 16, 20, 24, 28, 32
S_W = 36
S_M0 = 37
S_T = [38, 39, 40, 41]
S_XN = 42
S_H = 43
S_O = 44
S_PS = [45, 46]
S_PD = [47, 48]
S_NL = 49
S_C = 50
S_FFN = 52
S_PM0 = 53
S_THR = 54
S_A, S_B, S_D, S_E = 56, 57, 58, 59
S_HD, S_RT, S_FG = 60, 61, 62
V_A = [1, 2, 3, 4]
V_L16 = 5
V_DQ, V_D13, V_DP = 6, 7, 8
V_DK = [9, 10, 11, 12]
V_DV = 13
V_K = list(range(14, 22))
V_V = [22, 23, 24, 25]
V_O = 26
V_L = [27, 28]
V_T = [29, 30, 31]
QF = lambda qb, t: 32 + 4 * (2 * t + qb)
SB = lambda par, qb: 96 + 32 * par + 16 * qb
NEGM = lambda qb: 160 + 16 * qb
BF = lambda par, j, i: 64 * par + 16 * j + 4 * i
AF = lambda par, i: 128 + 16 * par + 4 * i
PKT = 192
OA = lambda qb, db: 64 * qb + 16 * db
KF = lambda t: 192 + 4 * t
VF = lambda ks, db: 224 + 16 * ks + 4 * db

PACK_LDS = 131072
THRESH = 2.0 ** 40


def acc(kind, c, j):
    if kind in ("Q0", "Q1"):
        t = c + (4 if kind == "Q1" else 0)
        return vr(32 + 8 * (2 * t + (j >> 1)) + 4 * (j & 1), 4)
    idx = 4 * c + j
    if kind == "G":
        return vr(160 + 4 * idx, 4)
    return vr(224 + 4 * idx, 4) if idx < 8 else ar(160 + 4 * (idx - 8), 4)


class K1:
    def __init__(self, ts=False):
        self.st = Stamps(ts, 1)
        self.tmpi = 0

    def tmp(self):
        self.tmpi = (self.tmpi + 1) % len(S_T)
        return S_T[self.tmpi]

    def dma_unit(self, u, slot):
        out = []
        tag = "u%s" % (u,)
        for pc in range(4):
            g = []
            if pc == 0:
                g.append(I(f"s_add_u32 m0, s{S_M0}, {slot*16384}"))
            if u[0] == "W":
                _, kb, kind = u
                pitch = 8192 if kind[0] == "Q" else 3456
                off = kb * 128 * pitch + (128 if kind == "Q1" else 0) + pc * (8 * pitch - 1024)
                s = self.tmp()
                g.append(I(f"s_mov_b32 s{s}, {off}"))
                d = {"Q": S_WQ, "G": S_W1, "U": S_W3}[kind[0]]
                v = V_DQ if kind[0] == "Q" else V_D13
                g.append(I(f"buffer_load_dwordx4 v{v}, {sr(d,4)}, s{s} offen offset:{1024*pc} lds", tag=tag))
            else:
                kind, i = u
                if pc == 0:
                    self.kvs = self.tmp()
                    g.append(I(f"s_mov_b32 s{self.kvs}, {i*16384}"))
                    self.kv_hold = self.kvs
                d = S_K if kind == "K" else S_V
                v = V_DK[pc] if kind == "K" else V_DV
                if pc == 0:
                    g[-1] = I(f"s_mov_b32 s{S_E}, {i*16384}")
                g.append(I(f"buffer_load_dwordx4 v{v}, {sr(d,4)}, s{S_E} offen offset:{1024*pc} lds", tag=tag))
            out.append(g)
        return out

    def b_loads(self, kb):
        out = []
        for j in range(4):
            for i in range(4):
                g = []
                if i == 0:
                    g.append(I(f"s_add_u32 s{S_D}, s{S_XN}, {kb*16384 + j*4096}"))
                g.append(I(f"buffer_load_dwordx4 {ar(BF(kb&1,j,i),4)}, v{V_L16}, {sr(S_WS,4)}, s{S_D} offen offset:{1024*i}"))
                out.append(g)
        return out

    def a_reads(self, slot, c, par):
        out = []
        for i in range(4):
            for rd in range(2):
                off = (slot & 3) * 16384 + i * 4096 + rd * 2048
                out.append(I(f"ds_read_b64_tr_b16 {ar(AF(par,i)+2*rd,2)}, v{V_A[c]} offset:{off}"))
        return out

    def pack_dma(self):
        out = []
        for k in range(2):
            for pc in range(4):
                g = []
                if pc == 0:
                    g.append(I(f"s_add_u32 m0, s{S_PM0}, {k*4096}"))
                s = self.tmp()
                g.append(I(f"s_add_u32 s{s}, s{S_PS[k]}, {pc*(8*1280-1024)}"))
                g.append(I(f"buffer_load_dwordx4 v{V_DP}, {sr((S_PA,S_PB)[k],4)}, s{s} offen offset:{1024*pc} lds", tag="pack"))
                out.append(g)
        return out

    def pack_reads(self):
        out = []
        for k in range(2):
            for c in range(4):
                for rd in range(2):
                    out.append(I(f"ds_read_b64_tr_b16 {ar(PKT+16*k+4*c+2*rd,2)}, v{V_K[c]} offset:{k*4096+rd*2048}",
                                 wait_vm=["pack"]))
        return out

    def pack_stores(self):
        return [I(f"buffer_store_dwordx4 {ar(PKT+16*k+4*c,4)}, v{V_L16}, {sr(S_WS,4)}, s{S_PD[k]} offen offset:{1024*c}")
                for k in range(2) for c in range(4)]

    def k_addr(self):
        out = []
        T0, T1, T2 = V_T
        out.append(I(f"v_and_b32 v{T0}, 31, v0"))
        out.append(I(f"v_bfe_u32 v{T1}, v0, 5, 1"))
        out.append(I(f"v_and_b32 v{T2}, 15, v0"))
        out.append(I(f"v_xor_b32 v{T1}, v{T1}, v{T2}"))
        out.append(I(f"v_lshlrev_b32 v{T1}, 4, v{T1}"))
        out.append(I(f"v_lshl_add_u32 v{T0}, v{T0}, 8, v{T1}"))
        for t in range(8):
            out.append(I(f"v_xor_b32 v{V_K[t]}, {32*t}, v{T0}"))
        return out

    def ffn_tile(self, c, j):
        idx = 4 * c + j
        G = 160 + 4 * idx
        out = []
        if idx < 8:
            U = 224 + 4 * idx
        else:
            U = 224 + 4 * (idx - 8)
            out += [I(f"v_accvgpr_read_b32 v{U+e}, a{160+4*(idx-8)+e}") for e in range(4)]
        out += [I(f"v_mul_f32 v{U+e}, v{G+e}, v{U+e}") for e in range(4)]
        out += [I(f"v_mul_f32 v{G+e}, s{S_NL}, v{G+e}") for e in range(4)]
        out += [I(f"v_exp_f32 v{G+e}, v{G+e}") for e in range(4)]
        out += [I(f"v_add_f32 v{G+e}, 1.0, v{G+e}") for e in range(4)]
        out += [I(f"v_rcp_f32 v{G+e}, v{G+e}") for e in range(4)]
        out += [I(f"v_mul_f32 v{U+e}, v{U+e}, v{G+e}") for e in range(4)]
        D = 160 + 4 * (4 * (c & ~1) + j) + 2 * (c & 1)
        out += [I(f"v_cvt_pk_bf16_f32 v{D+e}, v{U+2*e}, v{U+2*e+1}") for e in range(2)]
        return out

    def ffn_half(self, m):
        out = []
        for j in range(4):
            out += self.ffn_tile(2 * m, j) + self.ffn_tile(2 * m + 1, j)
            g = []
            if j == 0:
                g.append(I(f"s_mov_b32 s{S_A}, s{S_H}"))
            if j == 2:
                g.append(I(f"s_add_u32 s{S_A}, s{S_H}, {AB_RB}"))
            D = 160 + 4 * (8 * m + j)
            g.append(I(f"buffer_store_dwordx4 {vr(D,4)}, v{V_L16}, {sr(S_WS,4)}, s{S_A} offen offset:{m*2048+(j&1)*1024}"))
            out.append(g)
        return out

    def q_conv(self, P, packed):
        s, d = 32 + 8 * P, 32 + 4 * P
        out = []
        if packed:
            out += [I(f"v_pk_mul_f32 {vr(s+2*e,2)}, {vr(s+2*e,2)}, {sr(S_C,2)} op_sel_hi:[1,0]") for e in range(4)]
        else:
            out += [I(f"v_mul_f32 v{s+e}, s{S_C}, v{s+e}") for e in range(8)]
        out += [I(f"v_cvt_pk_bf16_f32 v{d+e}, v{s+2*e}, v{s+2*e+1}") for e in range(4)]
        return out, [I(f"v_permlane16_swap_b32 v{d}, v{d+2}"), I(f"v_permlane16_swap_b32 v{d+1}, v{d+3}")]

    def q_half(self, half, packed):
        out, sw = [], []
        for P in range(8 * half, 8 * half + 8):
            a, b = self.q_conv(P, packed)
            out += a[:len(a) // 2] + sw + a[len(a) // 2:]
            sw = b
        return out + [I("s_nop 0")] + sw

    def prologue(self):
        p = Prog()
        p("s_cmp_ge_u32 s2, 256")
        p("s_cbranch_scc1 L1_end")
        load_kernargs(p)
        self.st.stamp(p)
        T0, T1, T2 = V_T
        p(f"v_lshrrev_b32 v{T0}, 6, v0")
        p(f"v_readfirstlane_b32 s{S_W}, v{T0}")
        p(f"s_and_b32 s{S_A}, s2, 7")
        p(f"s_lshr_b32 s{S_B}, s2, 3")
        p(f"s_lshr_b32 s{S_RT}, s{S_B}, 2")
        p(f"s_and_b32 s{S_B}, s{S_B}, 3")
        p(f"s_lshl_b32 s{S_HD}, s{S_A}, 2")
        p(f"s_add_u32 s{S_HD}, s{S_HD}, s{S_B}")
        p(f"s_mul_i32 s{S_FG}, s{S_A}, 3")
        p(f"s_add_u32 s{S_FG}, s{S_FG}, s{S_B}")
        p(f"s_sub_u32 s{S_D}, s{S_RT}, s{S_A}")
        p(f"s_and_b32 s{S_D}, s{S_D}, 7")
        p(f"s_add_u32 s{S_D}, s{S_D}, 24")
        p(f"s_cmp_eq_u32 s{S_B}, 3")
        p(f"s_cselect_b32 s{S_FG}, s{S_D}, s{S_FG}")
        L = V_O
        p(f"v_and_b32 v{L}, 63, v0")
        p(f"v_lshlrev_b32 v{V_L16}, 4, v{L}")
        p(f"v_lshrrev_b32 v{T0}, 3, v{L}")
        p(f"v_and_b32 v{T1}, 6, v{T0}")
        p(f"v_and_b32 v{T2}, 7, v{L}")
        p(f"v_xor_b32 v{T1}, v{T1}, v{T2}")
        p(f"v_lshlrev_b32 v{T1}, 4, v{T1}")
        p(f"v_mul_u32_u24 v{V_DP}, 1280, v{T0}")
        p(f"v_add_u32 v{V_DP}, v{V_DP}, v{T1}")
        p(f"s_lshl_b32 s{S_D}, s{S_W}, 5")
        p(f"v_add_u32 v{T0}, s{S_D}, v{T0}")
        p(f"v_lshl_add_u32 v{V_DQ}, v{T0}, 13, v{T1}")
        p(f"v_mul_u32_u24 v{V_D13}, 3456, v{T0}")
        p(f"v_add_u32 v{V_D13}, v{V_D13}, v{T1}")
        p(f"s_lshl_b32 s{S_M0}, s{S_W}, 12")
        p("s_waitcnt lgkmcnt(0)")
        srd(p, S_WS, P_WS, WS_SIZE)
        p(f"s_lshl_b32 s{S_D}, s{S_HD}, 8")
        srd(p, S_WQ, P_WQ, 640 * 8192, off=S_D)
        p(f"s_min_u32 s{S_D}, s{S_FG}, 26")
        p(f"s_lshl_b32 s{S_D}, s{S_D}, 7")
        srd(p, S_W1, P_W1, 640 * 3456, off=S_D)
        srd(p, S_W3, P_W3, 640 * 3456, off=S_D)
        p(f"s_lshl_b32 s{S_D}, s{S_RT}, 2")
        p(f"s_add_u32 s{S_D}, s{S_D}, s{S_W}")
        p(f"s_mul_i32 s{S_XN}, s{S_D}, 81920")
        if XN_OFF:
            p(f"s_add_u32 s{S_XN}, s{S_XN}, {XN_OFF}")
        p(f"s_mul_i32 s{S_O}, s{S_D}, {2*AB_RB}")
        p(f"s_add_u32 s{S_O}, s{S_O}, {AB_OFF}")
        p(f"s_lshl_b32 s{S_D}, s{S_FG}, 12")
        p(f"s_add_u32 s{S_H}, s{S_O}, s{S_D}")
        p(f"s_add_u32 s{S_H}, s{S_H}, {128*2048}")
        p(f"s_lshl_b32 s{S_D}, s{S_HD}, 13")
        p(f"s_add_u32 s{S_O}, s{S_O}, s{S_D}")
        p(f"s_cmp_ge_u32 s{S_FG}, 27")
        p("s_cbranch_scc1 L1_noffn")
        return p.ins

    def prologue2(self):
        p = Prog()
        T0, T1, T2 = V_T
        L = V_O
        p(f"s_lshl_b32 s{S_D}, s{S_HD}, 19")
        p(f"s_add_u32 s{S_D}, s{S_D}, {1536*256}")
        srd(p, S_K, P_K, (131072,), off=S_D)
        srd(p, S_V, P_V, (131072,), off=S_D)
        p(f"s_lshl_b32 s{S_A}, s2, 2")
        p(f"s_add_u32 s{S_A}, s{S_A}, s{S_W}")
        srd(p, S_PA, P_WO, 4096 * 1280)
        for k in range(2):
            if k:
                p(f"s_add_u32 s{S_A}, s{S_A}, 1024")
            p(f"s_mul_i32 s{S_B}, s{S_A}, 52429")
            p(f"s_lshr_b32 s{S_B}, s{S_B}, 19")
            p(f"s_mul_i32 s{S_D}, s{S_B}, 10")
            p(f"s_sub_u32 s{S_D}, s{S_A}, s{S_D}")
            p(f"s_mul_i32 s{S_PD[k]}, s{S_B}, 40960")
            p(f"s_lshl_b32 s{S_E}, s{S_D}, 12")
            p(f"s_add_u32 s{S_PD[k]}, s{S_PD[k]}, s{S_E}")
            p(f"s_add_u32 s{S_PD[k]}, s{S_PD[k]}, {WP_OFF}")
            if k:
                p(f"s_cmp_ge_u32 s{S_B}, 128")
                p(f"s_cselect_b32 s{S_PB}, s{P_W2}, s{P_WO}")
                p(f"s_cselect_b32 s{S_PB+1}, s{P_W2+1}, s{P_WO+1}")
                p(f"s_mov_b32 s{S_PB+2}, {4096*1280}")
                p(f"s_cselect_b32 s{S_PB+2}, {1728*1280}, s{S_PB+2}")
                p(f"s_mov_b32 s{S_PB+3}, 0x20000")
                p(f"s_cselect_b32 s{S_E}, 128, 0")
                p(f"s_sub_u32 s{S_B}, s{S_B}, s{S_E}")
            p(f"s_mul_i32 s{S_PS[k]}, s{S_B}, {32*1280}")
            p(f"s_lshl_b32 s{S_D}, s{S_D}, 7")
            p(f"s_add_u32 s{S_PS[k]}, s{S_PS[k]}, s{S_D}")
        p(f"s_lshl_b32 s{S_PM0}, s{S_W}, 13")
        p(f"s_add_u32 s{S_PM0}, s{S_PM0}, {PACK_LDS}")
        p(f"s_mov_b32 s{S_NL}, {f32(-LOG2E)}")
        p(f"s_mov_b32 s{S_C}, {f32(LOG2E / 128 ** 0.5)}")
        p(f"s_mov_b32 s{S_C+1}, s{S_C}")
        p(f"s_mov_b32 s{S_THR}, {f32(THRESH)}")
        p(f"v_lshrrev_b32 v{T0}, 2, v{L}")
        p(f"v_bfe_u32 v{T1}, v{L}, 3, 2")
        p(f"v_lshlrev_b32 v{T1}, 5, v{T1}")
        p(f"v_lshl_add_u32 v{T1}, v{T0}, 7, v{T1}")
        p(f"v_and_b32 v{T2}, 3, v{L}")
        p(f"v_lshl_add_u32 v{T1}, v{T2}, 3, v{T1}")
        for c in range(4):
            p(f"v_xor_b32 v{V_K[c]}, {32*c}, v{T1}")
            p(f"v_or_b32 v{V_A[c]}, 0x10000, v{V_K[c]}")
            p(f"v_add_u32 v{V_K[c]}, s{S_PM0}, v{V_K[c]}")
        p(f"v_lshrrev_b32 v{T0}, 4, v{L}")
        p(f"v_and_b32 v{T1}, 15, v{L}")
        p(f"s_lshl_b32 s{S_D}, s{S_W}, 4")
        p(f"v_add_u32 v{T2}, s{S_D}, v{T0}")
        p(f"v_lshlrev_b32 v{T2}, 8, v{T2}")
        p(f"v_xor_b32 v{V_DK[0]}, v{T0}, v{T1}")
        p(f"v_lshl_add_u32 v{V_DK[0]}, v{V_DK[0]}, 4, v{T2}")
        for pc in range(1, 4):
            p(f"v_xor_b32 v{V_DK[pc]}, {64*pc}, v{V_DK[0]}")
        p(f"v_lshlrev_b32 v{T0}, 2, v{T0}")
        p(f"v_xor_b32 v{V_DV}, v{T0}, v{T1}")
        p(f"v_lshl_add_u32 v{V_DV}, v{V_DV}, 4, v{T2}")
        p(f"v_bfe_u32 v{T0}, v{L}, 2, 2")
        p(f"v_lshrrev_b32 v{T1}, 5, v{L}")
        p(f"v_lshl_add_u32 v{T1}, v{T1}, 2, v{T0}")
        p(f"v_lshlrev_b32 v{T1}, 8, v{T1}")
        p(f"v_lshl_add_u32 v{T1}, v{T0}, 6, v{T1}")
        p(f"v_bfe_u32 v{T0}, v{L}, 4, 1")
        p(f"v_lshl_add_u32 v{T1}, v{T0}, 5, v{T1}")
        p(f"v_and_b32 v{T0}, 3, v{L}")
        p(f"v_lshl_add_u32 v{T1}, v{T0}, 3, v{T1}")
        for db in range(4):
            p(f"v_xor_b32 v{V_V[db]}, {64*db}, v{T1}")
        p(f"v_bfe_u32 v{T0}, v{L}, 4, 1")
        p(f"v_lshrrev_b32 v{T1}, 5, v{L}")
        p(f"v_and_b32 v{T2}, 15, v{L}")
        p(f"v_lshl_add_u32 v{T1}, v{T1}, 4, v{T2}")
        p(f"v_lshlrev_b32 v{T1}, 4, v{T1}")
        p(f"v_lshl_add_u32 v{V_O}, v{T0}, 10, v{T1}")
        for qb in range(2):
            p(f"v_mov_b32 v{V_L[qb]}, 0")
        return p.ins

    def gemm(self, ffn):
        if ffn:
            W = [(kb, k) for kb in range(3) for k in ("G", "U", "Q0", "Q1")]
            W += [(3, "G"), (3, "U"), (4, "G"), (4, "U"), (3, "Q0"), (3, "Q1"), (4, "Q0"), (4, "Q1")]
            bload_at = {4: 2, 8: 3, 12: 4}
            s0 = 4
            pack_at = (1, 5, 6)
        else:
            W = [(kb, k) for kb in range(5) for k in ("Q0", "Q1")]
            bload_at = {2: 2, 4: 3, 6: 4}
            s0 = 6
            pack_at = (1, 4, 5)
        nW = len(W)
        units = [("W",) + w for w in W] + [(k, i) for i in range(8) for k in ("K", "V")]
        slot = lambda n: (n + s0) % 8
        p = Prog()
        fl = lambda gs: [x for g in gs for x in (g if isinstance(g, list) else [g])]
        p.add(fl(self.dma_unit(units[0], slot(0))))
        p.add(fl(self.b_loads(0)))
        for n in (1, 2, 3):
            p.add(fl(self.dma_unit(units[n], slot(n))))
        p.add(fl(self.b_loads(1)))
        for n in (4, 5, 6):
            p.add(fl(self.dma_unit(units[n], slot(n))))
        p.add(self.prologue2())
        first = set()
        p("s_barrier", wait_vm=["u%s" % (units[0],)])
        p.add(self.a_reads(slot(0), 0, 0))
        p.add(fl(self.dma_unit(units[7], slot(7))))
        self.st.stamp(p)
        carry = []
        par = 0
        seen = set()
        for n in range(nW):
            _, kb, kind = units[n]
            for c in range(4):
                mf = []
                for j in range(4):
                    for i in range(4):
                        d = acc(kind, c, j)
                        cin = d if ((kind, c, j) in seen or i > 0) else "0"
                        mf.append(I(f"v_mfma_f32_16x16x32_bf16 {d}, {ar(AF(par,i),4)}, {ar(BF(kb&1,j,i),4)}, {cin}"))
                    seen.add((kind, c, j))
                fill = []
                if c < 3:
                    for k, x in enumerate(self.a_reads(slot(n), c + 1, par ^ 1)):
                        fill.append((k // 2, x, "ds"))
                else:
                    nxt = units[n + 1]
                    if nxt[0] == "W" and (slot(n) >> 2) != (slot(n + 1) >> 2):
                        for k in range(4):
                            fill.append((k // 2, I(f"v_xor_b32 v{V_A[k]}, 0x10000, v{V_A[k]}"), "x"))
                    fill.append((3, I("s_barrier", wait_vm=["u%s" % (nxt,)], wait_lgkm="all"), "ds"))
                    if nxt[0] == "W":
                        for k, x in enumerate(self.a_reads(slot(n + 1), 0, par ^ 1)):
                            fill.append((4 + k // 2, x, "ds"))
                    else:
                        for k, x in enumerate(self.k_reads(0)):
                            fill.append((4 + k // 2, x, "ds"))
                    if n + 8 < nW + 7:
                        for k, g in enumerate(self.dma_unit(units[n + 8], slot(n + 8))):
                            fill.append((8 + 2 * k, g, "ds"))
                if n in bload_at and c < 3:
                    gs = self.b_loads(bload_at[n])
                    lo, hi = (0, 6, 12)[c], (6, 12, 16)[c]
                    for k, g in enumerate(gs[lo:hi]):
                        fill.append((4 + 2 * k, g, "b"))
                if n == pack_at[0] and c < 2:
                    for k, g in enumerate(self.pack_dma()[4 * c:4 * c + 4]):
                        fill.append((5 + 2 * k, g, "pk"))
                if n == pack_at[1] and c < 2:
                    for k, g in enumerate(self.pack_reads()[8 * c:8 * c + 8]):
                        fill.append((5 + k, g, "pk"))
                if n == pack_at[2] and c < 2:
                    for k, g in enumerate(self.pack_stores()[4 * c:4 * c + 4]):
                        fill.append((5 + 2 * k, g, "pk"))
                if n == pack_at[2] and c == 2:
                    for k, g in enumerate(self.k_addr()):
                        fill.append((4 + k // 2, g, "pk"))
                p.add(schedule(mf, fill, carry, carry_from=4))
                par ^= 1
                if ffn and (kb, kind) == (4, "U") and c in (1, 3):
                    carry += self.ffn_half(c >> 1)
                if (kb, kind) == (4, "Q0") and c == 3:
                    carry += self.q_half(0, False)
        left = len(carry)
        p.add(fl(carry))
        p.add(self.q_half(1, True))
        self.left = getattr(self, "left", []) + [left]
        return p.ins

    def k_reads(self, n):
        i, blk = n >> 1, n & 1
        return [I(f"ds_read_b128 {ar(KF(t),4)}, v{V_K[t]} offset:{(i&1)*32768+blk*8192}") for t in range(8)]

    def v_reads(self, n):
        i, blk = n >> 1, n & 1
        return [I(f"ds_read_b64_tr_b16 {ar(VF(ks,db)+2*rd,2)}, v{V_V[db]} offset:{16384+(i&1)*32768+blk*8192+ks*4096+rd*2048}")
                for ks in range(2) for db in range(4) for rd in range(2)]

    def qk(self, n):
        out = []
        for t in range(8):
            for qb in range(2):
                d = vr(SB(n & 1, qb), 16)
                c = d if t else (vr(NEGM(qb), 16) if n >= 2 else "0")
                out.append(I(f"v_mfma_f32_32x32x16_bf16 {d}, {ar(KF(t),4)}, {vr(QF(qb,t),4)}, {c}"))
        return out

    def pv(self, n):
        out = []
        for ks in range(2):
            for db in range(4):
                for qb in range(2):
                    d = ar(OA(qb, db), 16)
                    c = "0" if (n == 0 and ks == 0) else d
                    out.append(I(f"v_mfma_f32_32x32x16_bf16 {d}, {ar(VF(ks,db),4)}, {vr(SB(n&1,qb)+8*ks,4)}, {c}"))
        return out

    def sm(self, n, qb, ks):
        R = SB(n & 1, qb) + 8 * ks
        l = V_L[qb]
        e = lambda k: I(f"v_exp_f32 v{R+k}, v{R+k}")
        a = lambda k: I(f"v_add_f32 v{l}, v{l}, v{R+k}")
        c = lambda k: I(f"v_cvt_pk_bf16_f32 v{R+k}, v{R+2*k}, v{R+2*k+1}")
        pre = []
        if n < 2:
            pre = [I(f"v_add_f32 v{R+k}, v{NEGM(qb)}, v{R+k}") for k in range(8)]
        return pre + [e(0), e(1), a(0), e(2), a(1), c(0), e(3), a(2), e(4), a(3), c(1), e(5), a(4), e(6), a(5), c(2),
                      e(7), a(6), a(7), c(3)]

    def first_max(self):
        out = []
        T0, T1, T2 = V_T
        for qb in range(2):
            S = SB(0, qb)
            m = NEGM(qb)
            out.append(I(f"v_max3_f32 v{m}, v{S}, v{S+1}, v{S+2}"))
            out.append(I(f"v_max3_f32 v{m+1}, v{S+3}, v{S+4}, v{S+5}"))
            for k in range(3, 8):
                out.append(I(f"v_max3_f32 v{m+(k&1)}, v{m+(k&1)}, v{S+2*k}, v{S+2*k+1}"))
            out.append(I(f"v_max_f32 v{m}, v{m}, v{m+1}"))
            out.append(I(f"v_mov_b32 v{m+1}, v{m}"))
        out.append(I("s_nop 0"))
        for qb in range(2):
            m = NEGM(qb)
            out.append(I(f"v_permlane32_swap_b32 v{m}, v{m+1}"))
        for qb in range(2):
            m = NEGM(qb)
            out.append(I(f"v_max_f32 v{m}, v{m}, v{m+1}"))
            out.append(I(f"v_sub_f32 v{m}, 0, v{m}"))
        return out

    def attention(self):
        p = Prog()
        p("L1_attn:")
        self.st.stamp(p)
        sp = lambda lst, g0, per, q: [(g0 + k / per, x, q) for k, x in enumerate(lst)]
        fill = [(2 * t + 1, x, "ds") for t, x in enumerate(self.k_reads(1))]
        p.add(schedule(self.qk(0), fill))
        for n in range(16):
            i = n >> 1
            fill = []
            g0 = 0
            if n % 2 == 0:
                tags = [f"u('V', {i})"] + ([f"u('K', {i+1})"] if i < 7 else [])
                fill.append((0, I("s_barrier", wait_vm=tags, wait_lgkm="all"), "ds"))
                g0 = 1
            if n < 15:
                fill += sp(self.v_reads(n), g0, 2, "ds")
                if n % 2 == 0:
                    gs = []
                    if i + 3 < 8:
                        gs += self.dma_unit(("V", i + 3), (2 * (i + 3) + 1) % 8)
                    if i + 4 < 8:
                        gs += self.dma_unit(("K", i + 4), (2 * (i + 4)) % 8)
                    fill += sp(gs, 10, 1.5, "ds")
                if n in (2, 6, 10):
                    fill += sp([I(f"v_xor_b32 v{V_K[t]}, 0x10000, v{V_K[t]}") for t in range(8)], 1, 1, "x")
                if n == 0:
                    fill += sp(self.first_max() + self.sm(0, 0, 0) + self.sm(0, 1, 0), 2, 8, "v")
                else:
                    fill += sp(self.sm(n, 0, 1) + self.sm(n, 1, 1), 0, 3.2, "v")
                p.add(schedule(self.qk(n + 1), fill))
            mf = self.pv(n)
            fill = []
            if n + 2 < 16:
                fill += sp(self.k_reads(n + 2), 0, 2, "ds")
            if n in (3, 7, 11):
                fill += sp([I(f"v_xor_b32 v{V_V[t]}, 0x10000, v{V_V[t]}") for t in range(4)], 1, 1, "x")
            if n == 0:
                fill += sp(self.sm(0, 0, 1) + self.sm(0, 1, 1), 0, 8, "v")
                p.add(schedule(mf[:8], fill))
                movs = [I(f"v_mov_b32 v{NEGM(qb)+k}, v{NEGM(qb)}") for qb in range(2) for k in range(1, 16)]
                fill = sp(self.sm(1, 0, 0) + self.sm(1, 1, 0) + movs, 0, 8, "v")
                p.add(schedule(mf[8:], fill))
            elif n < 14:
                fill += sp(self.sm(n + 1, 0, 0) + self.sm(n + 1, 1, 0), 2, 3.4, "v")
                p.add(schedule(mf, fill))
            elif n == 14:
                vr15 = self.v_reads(15)
                fill += [(2 * (k // 2) + 1, x, "ds") for k, x in enumerate(vr15)]
                fill += sp(self.sm(15, 0, 0) + self.sm(15, 1, 0) + self.sm(15, 0, 1) + self.sm(15, 1, 1), 1, 8, "v")
                p.add(schedule(mf, fill))
            else:
                T0, T1, T2 = V_T
                fin = []
                for qb in range(2):
                    fin.append(I(f"v_mov_b32 v{V_T[qb]}, v{V_L[qb]}"))
                fin.append(I("s_nop 0"))
                for qb in range(2):
                    fin.append(I(f"v_permlane32_swap_b32 v{V_L[qb]}, v{V_T[qb]}"))
                for qb in range(2):
                    fin.append(I(f"v_add_f32 v{V_L[qb]}, v{V_L[qb]}, v{V_T[qb]}"))
                fin.append(I(f"v_add_f32 v{T2}, v{V_L[0]}, v{V_L[1]}"))
                fill += sp(fin, 0, 2, "v")
                p.add(schedule(mf, fill))
        self.st.stamp(p)
        return p.ins

    def o_epilogue(self):
        p = Prog()
        p("L1_oepi:")
        for qb in range(2):
            p(f"v_rcp_f32 v{NEGM(qb)}, v{V_L[qb]}")
        k = 0
        for qb in range(2):
            for db in range(4):
                T = 96 + 16 * (k % 4)
                D = 192 + 8 * (k % 4)
                k += 1
                for r in range(16):
                    p(f"v_accvgpr_read_b32 v{T+r}, a{OA(qb,db)+r}")
                for r in range(8):
                    p(f"v_pk_mul_f32 {vr(T+2*r,2)}, {vr(T+2*r,2)}, {vr(NEGM(qb),2)} op_sel_hi:[1,0]")
                for pc in range(2):
                    for e in range(4):
                        s = T + 4 * pc + 8 * (e >> 1) + 2 * (e & 1)
                        p(f"v_cvt_pk_bf16_f32 v{D+4*pc+e}, v{s}, v{s+1}")
                if db % 2 == 0:
                    p(f"s_add_u32 s{S_A}, s{S_O}, {qb*AB_RB + db*2048}")
                for pc in range(2):
                    p(f"buffer_store_dwordx4 {vr(D+4*pc,4)}, v{V_O}, {sr(S_WS,4)}, s{S_A} offen offset:{(db&1)*2048+512*pc}")
        self.st.stamp(p)
        self.st.flush(p, S_WS, 96, 97)
        p("L1_end:")
        p("s_endpgm")
        return p.ins

    def build(self, report=False):
        pro = self.prologue()
        n0 = self.st.n
        gf = self.gemm(True)
        self.st.n = n0
        gn = [I("L1_noffn:")] + self.gemm(False) + [I("s_branch L1_attn")]
        at = self.attention()
        oe = self.o_epilogue()
        finalize([pro + gf + at + oe, pro + gn + at + oe], report)
        print("k1 estimate: gemmF", estimate(gf), "gemmN", estimate(gn), "attn", estimate(at), "oepi", estimate(oe), "carry left", self.left)
        return text_of(pro + gf + at + oe + gn)


def gen_k1(ts=False, report=False):
    return K1(ts).build(report)
```

```python
from common import *

S_AB, S_WP, S_X, S_OUT = 4, 8, 12, 16
S_W = 36
S_A, S_B, S_D, S_E = 56, 57, 58, 59
S_AO, S_BO = 40, 41
S_T = [42, 43, 44, 45]
DEPTH = 6
NS, NF = 32, 14


def gen_k2y(ts=False, report=False):
    p = Prog()
    st = Stamps(ts, 2)
    FR = lambda stg, k: 36 * stg + 4 * k
    ACC = lambda part, ct, j: 64 + 80 * part + 4 * (4 * ct + j)
    p("s_cmp_ge_u32 s2, 256")
    p("s_cbranch_scc1 L2_end")
    load_kernargs(p)
    st.stamp(p)
    p("v_lshrrev_b32 v1, 6, v0")
    p("v_and_b32 v2, 63, v0")
    p(f"v_readfirstlane_b32 s{S_W}, v1")
    p("v_lshlrev_b32 v3, 4, v2")
    p("v_add_u32 v5, 4096, v3")
    for jj in range(4):
        p(f"v_add_u32 v4, {jj}, v1")
        p(f"v_bfe_u32 v9, v4, 1, 1")
        p(f"v_mul_u32_u24 v9, {AB_RB}, v9")
        p(f"v_and_b32 v4, 1, v4")
        p(f"v_lshl_add_u32 v9, v4, 10, v9")
        p(f"v_add_u32 v{20+jj}, v9, v3")
    p(f"s_and_b32 s{S_A}, s2, 7")
    p(f"s_lshr_b32 s{S_B}, s2, 3")
    p(f"s_lshr_b32 s60, s{S_A}, 1")
    p(f"s_lshl_b32 s60, s60, 3")
    p(f"s_lshr_b32 s{S_D}, s{S_B}, 2")
    p(f"s_add_u32 s60, s60, s{S_D}")
    p(f"s_and_b32 s61, s{S_A}, 1")
    p(f"s_lshl_b32 s61, s61, 2")
    p(f"s_and_b32 s{S_D}, s{S_B}, 3")
    p(f"s_add_u32 s61, s61, s{S_D}")
    p(f"s_mul_i32 s46, s60, {2*AB_RB}")
    p(f"s_add_u32 s46, s46, {AB_OFF}")
    p(f"s_mul_i32 s47, s61, 5120")
    p(f"s_add_u32 s47, s47, {WP_OFF}")
    p(f"s_lshl_b32 s{S_D}, s{S_W}, 5")
    p(f"s_mul_i32 s{S_E}, s{S_W}, 14")
    p(f"s_cmp_eq_u32 s{S_W}, 3")
    p(f"s_cselect_b32 s{S_E}, 41, s{S_E}")
    p(f"s_add_u32 s{S_E}, s{S_E}, 128")
    for (dst, k) in ((48, S_D), (50, S_E)):
        p(f"s_lshl_b32 s{S_A}, s{k}, 11")
        p(f"s_add_u32 s{dst}, s46, s{S_A}")
        p(f"s_mul_i32 s{S_A}, s{k}, 40960")
        p(f"s_add_u32 s{dst+1}, s47, s{S_A}")
    p("s_waitcnt lgkmcnt(0)")
    srd(p, S_AB, P_WS, WS_SIZE)
    srd(p, S_X, P_X, 2048 * 1280)
    srd(p, S_OUT, P_OUT, 2048 * 1280)
    ti = [0]

    def loads(step):
        part, k = (0, step) if step < NS else (1, step - NS)
        stg = step % DEPTH
        out = []
        ti[0] ^= 1
        sa, sb = S_T[2 * ti[0]], S_T[2 * ti[0] + 1]
        for e in range(9):
            g = []
            if e == 0:
                g.append(I(f"s_add_u32 s{sa}, s{49+2*part}, {k*40960}"))
            if e == 5:
                g.append(I(f"s_add_u32 s{sb}, s{48+2*part}, {k*2048}"))
            if e < 4:
                g.append(I(f"buffer_load_dwordx4 {ar(FR(stg,e),4)}, v3, {sr(S_AB,4)}, s{sa} offen offset:{1024*e}"))
            elif e == 4:
                g.append(I(f"buffer_load_dwordx4 {ar(FR(stg,e),4)}, v5, {sr(S_AB,4)}, s{sa} offen"))
            else:
                j = e - 5
                g.append(I(f"buffer_load_dwordx4 {ar(FR(stg,e),4)}, v{20+j}, {sr(S_AB,4)}, s{sb} offen"))
            out.append(g)
        return out
    fl = lambda gs: [x for g in gs for x in g]
    for s in range(DEPTH):
        p.add(fl(loads(s)))
    p("v_and_b32 v6, 15, v2")
    p("v_lshrrev_b32 v7, 4, v2")
    p(f"s_lshl_b32 s{S_A}, s60, 6")
    p(f"s_lshl_b32 s{S_B}, s{S_W}, 4")
    p(f"s_add_u32 s{S_A}, s{S_A}, s{S_B}")
    p(f"v_add_u32 v6, s{S_A}, v6")
    p("v_mul_u32_u24 v6, 1280, v6")
    p("v_lshl_add_u32 v6, v7, 3, v6")
    p(f"s_mul_i32 s52, s61, 160")
    for ct in range(5):
        p(f"buffer_load_dwordx2 {vr(10+2*ct,2)}, v6, {sr(S_X,4)}, s52 offen offset:{32*ct}")
    st.stamp(p)
    skip_lo = skip_hi = None
    for step in range(NS + NF):
        part, k = (0, step) if step < NS else (1, step - NS)
        stg = step % DEPTH
        mf = []
        for ct in range(5):
            for j in range(4):
                d = vr(ACC(part, ct, j), 4)
                mf.append(I(f"v_mfma_f32_16x16x32_bf16 {d}, {ar(FR(stg,ct),4)}, {ar(FR(stg,5+j),4)}, {d if k else 0}"))
        if step == NS + NF - 1:
            p(f"s_cmp_ge_u32 s{S_W}, 2")
            br = p("s_cbranch_scc1 L2_skip", wait_vm="all")
            skip_lo = len(p.ins)
            p.add(mf)
            skip_hi = len(p.ins)
            p("L2_skip:")
            continue
        fill = []
        if step >= 1 and step - 1 + DEPTH < NS + NF:
            fill = [(2 * e, g, "l") for e, g in enumerate(loads(step - 1 + DEPTH))]
        p.add(schedule(mf, fill))
    st.stamp(p)
    for jj in range(1, 4):
        p(f"s_add_u32 s{S_A}, s{S_W}, {jj}")
        p(f"s_and_b32 s{S_A}, s{S_A}, 3")
        p(f"s_mul_i32 s{S_A}, s{S_A}, 30720")
        p(f"s_add_u32 s{S_A}, s{S_A}, {(jj-1)*10240}")
        p(f"v_add_u32 v8, s{S_A}, v3")
        for part in range(2):
            for ct in range(5):
                p(f"ds_write_b128 v8, {vr(ACC(part,ct,jj),4)} offset:{1024*(5*part+ct)}")
    p(f"s_mul_i32 s{S_A}, s{S_W}, 30720")
    p(f"v_add_u32 v8, s{S_A}, v3")
    p("s_barrier", wait_lgkm="all")
    for t in range(10):
        part, ct = divmod(t, 5)
        for jj in range(1, 4):
            p(f"ds_read_b128 {vr(ACC(part,ct,jj),4)}, v8 offset:{(jj-1)*10240+1024*t}")
    for t in range(10):
        part, ct = divmod(t, 5)
        A = lambda jj, e: vr(ACC(part, ct, jj) + 2 * e, 2)
        for e in range(2):
            p(f"v_pk_add_f32 {A(0,e)}, {A(0,e)}, {A(1,e)}")
            p(f"v_pk_add_f32 {A(2,e)}, {A(2,e)}, {A(3,e)}")
        for e in range(2):
            p(f"v_pk_add_f32 {A(0,e)}, {A(0,e)}, {A(2,e)}")
    p(f"s_mov_b32 s{S_A}, {f32(-LOG2E)}")
    for ct in range(5):
        S, F, T, X = ACC(0, ct, 0), ACC(1, ct, 0), ACC(1, ct, 1), ACC(0, ct, 1)
        for e in range(4):
            p(f"v_mul_f32 v{T+e}, s{S_A}, v{F+e}")
        for e in range(4):
            p(f"v_exp_f32 v{T+e}, v{T+e}")
        for e in range(4):
            p(f"v_mul_f32 v{S+e}, v{S+e}, v{F+e}")
        for e in range(4):
            p(f"v_add_f32 v{T+e}, 1.0, v{T+e}")
        for e in range(4):
            p(f"v_rcp_f32 v{T+e}, v{T+e}")
        for e in range(2):
            p(f"v_lshlrev_b32 v{X+2*e}, 16, v{10+2*ct+e}")
            p(f"v_and_b32 v{X+2*e+1}, 0xffff0000, v{10+2*ct+e}")
        for e in range(4):
            p(f"v_fmac_f32 v{X+e}, v{S+e}, v{T+e}")
        for e in range(2):
            p(f"v_cvt_pk_bf16_f32 v{10+2*ct+e}, v{X+2*e}, v{X+2*e+1}")
        p(f"buffer_store_dwordx2 {vr(10+2*ct,2)}, v6, {sr(S_OUT,4)}, s52 offen offset:{32*ct}")
    st.stamp(p)
    st.flush(p, S_AB, 8, 9)
    p("L2_end:")
    p("s_endpgm")
    finalize([p.ins, p.ins[:skip_lo] + p.ins[skip_hi:]], report)
    print("k2y estimate", estimate(p.ins))
    return text_of(p.ins)
```

```python
import sys
from common import *
from k0 import gen_k0
from k1 import gen_k1
from k2y import gen_k2y

def build(ts=False, report=False):
    ref = open(f"cdna_kernels/{NAME}.s.ref").read()
    head = [l for l in ref.split("\n") if l.startswith(";") and "@launch" not in l and "Override launch" not in l and "grid=ceil" not in l]
    ks = [("ln_kernel", gen_k0(ts), (128, 320, 2560), (96, 96)),
          ("attn_kernel", gen_k1(ts, report), (256, 256, 163840), (512, 256)),
          ("proj_kernel", gen_k2y(ts, report), (256, 256, 122880), (512, 256))]
    s = "\n".join(head) + "\n"
    for n, _, (g, b, l), _ in ks:
        s += f"; @launch kernel={n} grid=({g},1,1) block=({b},1,1) lds={l}\n"
    s += '.amdgcn_target "amdgcn-amd-amdhsa--gfx950"\n'
    for n, body, _, _ in ks:
        s += kernel_text(n, body)
    s += '.section .rodata,"a"\n'
    for n, _, _, (v, a) in ks:
        s += kd_text(n, v, a)
    return s

if __name__ == "__main__":
    out = sys.argv[1]
    ts = "ts" in sys.argv[2:]
    s = build(ts, "report" in sys.argv[2:])
    open(out, "w").write(s)
    print(len(s), "bytes,", s.count("\n"), "lines")
```
